```python
import torch

def _softmax(x, axis=-1):
    return torch.softmax(x, dim=axis)
def _gelu(x):
    return torch.nn.functional.gelu(x, approximate="tanh")
def _silu(x):
    return torch.nn.functional.silu(x)
def _sigmoid(x):
    return torch.sigmoid(x)
def _layernorm(x, axis=-1, eps=1e-5):
    m = x.mean(dim=axis, keepdim=True)
    v = x.var(dim=axis, keepdim=True, unbiased=False)
    return (x - m) / torch.sqrt(v + eps)
def _scatter_add(tgt, idx, src, axis=0):
    return tgt.clone().index_add_(axis, idx, src)
def _segment_sum(src, seg, n):
    out = torch.zeros((n,) + src.shape[1:], dtype=src.dtype)
    return out.index_add_(0, seg, src)
def _pad(x, pw):
    flat = tuple(v for pair in reversed(pw) for v in pair)
    return torch.nn.functional.pad(x, flat)

kernel_name = 'standalone__deep_cross_pnn__recsys'

def setup_inputs():

    _w = (lambda a: (lambda t: t.to(torch.bfloat16) if t.is_floating_point() else t)(torch.as_tensor(a)))
    B, F, D, V = 4096, 100, 128, min(1000, 100000)
    H = 4 * D
    return {
        "idx": _w((lambda lo, hi, *s: torch.randint(lo, hi, s))(0, V, B, F).to(torch.int64)),
        "table": _w((lambda *s: torch.randn(*s, dtype=torch.bfloat16) * 1.6)(V, D) * (D ** -0.5)),
        "w_p": _w((lambda *s: torch.randn(*s, dtype=torch.bfloat16) * 0.05)(F * F) * ((F * F) ** -0.5)),
        "w1": _w((lambda *s: torch.randn(*s, dtype=torch.bfloat16) * 1.6)(F * D, H) * ((F * D) ** -0.5)),
        "b1": _w((lambda *s: torch.randn(*s, dtype=torch.bfloat16) * 6.4)(H) * 0.01),
        "w2": _w((lambda *s: torch.randn(*s, dtype=torch.bfloat16) * 0.05)(H) * (H ** -0.5)),
        "b2": _w((lambda *s: torch.randn(*s, dtype=torch.bfloat16) * 0.8)(1) * 0.01),
    }

def reference(idx, table, w_p, w1, b1, w2, b2):
    emb = table[idx]
    B = emb.shape[0]; F = emb.shape[1]; D = emb.shape[2]
    ip = torch.einsum('bid,bjd->bij', emb, emb)
    ip = ip.reshape(B, F * F)
    logit_p = ip @ w_p
    z = emb.reshape(B, F * D)
    h = _gelu(z @ w1 + b1)
    logit_d = h @ w2 + b2
    return logit_p + logit_d
```

```python
import re

def _expand(tok):
    tok = tok.strip()
    m = re.fullmatch(r'(-?)(?:abs\()?([vas])(\d+)\)?', tok)
    if m:
        return [(m.group(2), int(m.group(3)))]
    m = re.fullmatch(r'([vas])\[(\d+):(\d+)\]', tok)
    if m:
        return [(m.group(1), i) for i in range(int(m.group(2)), int(m.group(3)) + 1)]
    if tok == 'vcc':
        return [('s', 'vcc')]
    if tok == 'exec':
        return [('s', 'exec')]
    if tok == 'm0':
        return [('s', 'm0')]
    return []

TRANS = ('v_exp_f32', 'v_log_f32', 'v_rcp_f32', 'v_rsq_f32', 'v_sqrt_f32', 'v_sin_f32', 'v_cos_f32')

class Ins:
    __slots__ = ('text', 'op', 'cls', 'rd', 'wr', 'srcC', 'srcAB', 'passes', 'ws', 'storedata', 'dpp', 'lds_dma')

def parse(text):
    t = text.split(';')[0].strip()
    ins = Ins()
    ins.text = text
    parts = t.split(None, 1)
    op = parts[0]
    ins.op = op
    rest = parts[1] if len(parts) > 1 else ''
    ops = []
    depth = 0
    cur = ''
    for ch in rest:
        if ch == '[':
            depth += 1
        if ch == ']':
            depth -= 1
        if ch == ',' and depth == 0:
            ops.append(cur.strip()); cur = ''
        else:
            cur += ch
    if cur.strip():
        ops.append(cur.strip())
    mods = ''
    if ops:
        sp = ops[-1].split(None, 1)
        ops[-1] = sp[0]
        mods = sp[1] if len(sp) > 1 else ''
    R = [_expand(o) for o in ops]
    ins.rd = set(); ins.wr = set(); ins.srcC = set(); ins.srcAB = set()
    ins.passes = 0; ins.ws = 1; ins.storedata = set(); ins.dpp = False; ins.lds_dma = False
    if op == 's_nop':
        ins.cls = 'nop'; ins.ws = int(ops[0], 0) + 1
        return ins
    if op.startswith('v_mfma') or op.startswith('v_smfmac'):
        ins.cls = 'mfma'
        ins.wr = set(R[0]); ins.srcAB = set(R[1]) | set(R[2])
        if op.startswith('v_smfmac'):
            ins.srcC = set(R[0]); ins.srcAB |= set(R[3])
        else:
            ins.srcC = set(R[3])
        ins.rd = ins.srcAB | ins.srcC
        ins.passes = 8 if '32x32' in op else 4
        return ins
    if op.startswith('v_'):
        ins.cls = 'valu'
        ins.dpp = ('_dpp' in op) or ('quad_perm' in mods) or ('row_' in mods)
        if op.startswith('v_cmp'):
            ins.wr = set(R[0])
            for r in R[1:]: ins.rd |= set(r)
        elif op.startswith('v_permlane') and 'swap' in op:
            ins.wr = set(R[0]) | set(R[1]); ins.rd = set(ins.wr)
        elif op in ('v_add_co_u32', 'v_sub_co_u32', 'v_addc_co_u32'):
            ins.wr = set(R[0]) | set(R[1])
            for r in R[2:]: ins.rd |= set(r)
        else:
            ins.wr = set(R[0])
            for r in R[1:]: ins.rd |= set(r)
            if op.startswith('v_fmac') or op.startswith('v_dot2c') or op.startswith('v_writelane') or ins.dpp:
                ins.rd |= set(R[0])
        return ins
    if op.startswith('ds_'):
        ins.cls = 'ds'
        if op.startswith('ds_read') or op.startswith('ds_bpermute') or op.startswith('ds_swizzle') or op.startswith('ds_permute'):
            ins.wr = set(R[0])
            for r in R[1:]: ins.rd |= set(r)
        else:
            for r in R: ins.rd |= set(r)
        return ins
    if op.startswith('buffer_') or op.startswith('global_'):
        ins.cls = 'vmem'
        if 'load' in op:
            if re.search(r'\blds\b', mods) or 'load_lds' in op:
                ins.lds_dma = True
                for r in R: ins.rd |= set(r)
                ins.rd.add(('s', 'm0'))
            else:
                ins.wr = set(R[0])
                for r in R[1:]: ins.rd |= set(r)
        elif 'atomic' in op and re.search(r'\bsc0\b', mods):
            ins.wr = set(R[0])
            for r in R: ins.rd |= set(r)
        else:
            for r in R: ins.rd |= set(r)
            if 'x4' in op or 'x3' in op:
                ins.storedata = set(R[0]) if op.startswith('buffer_') else set(R[1])
        return ins
    if op.startswith('s_'):
        ins.cls = 'salu'
        if op.startswith('s_cmp') or op.startswith('s_bitcmp') or op.startswith('s_cbranch') or op in ('s_branch', 's_waitcnt', 's_barrier', 's_endpgm', 's_sleep', 's_setprio'):
            for r in R: ins.rd |= set(r)
        else:
            if R:
                ins.wr = set(R[0])
            for r in R[1:]: ins.rd |= set(r)
            if 'saveexec' in op:
                ins.wr.add(('s', 'exec'))
        return ins
    raise ValueError('unknown op ' + text)

def required(prev, cur):
    n = 0
    if prev.cls == 'valu':
        vw = {r for r in prev.wr if r[0] in 'va'}
        sw = {r for r in prev.wr if r[0] == 's'}
        if cur.cls == 'mfma' and vw & cur.rd:
            n = max(n, 2)
        if cur.cls == 'valu':
            if sw & cur.rd:
                n = max(n, 4 if cur.op.startswith(('v_readlane', 'v_writelane')) else 2)
            if vw & cur.rd:
                if cur.op.startswith(('v_readfirstlane', 'v_readlane')):
                    n = max(n, 1)
                if cur.op.startswith('v_permlane') or cur.dpp:
                    n = max(n, 2)
                if prev.op.startswith(TRANS) and not cur.op.startswith(TRANS):
                    n = max(n, 1)
                if 'op_sel' in prev.text or 'dst_sel:WORD' in prev.text or 'dst_sel:BYTE' in prev.text:
                    n = max(n, 1)
        if cur.cls == 'vmem' and sw & cur.rd:
            n = max(n, 5)
        if cur.cls == 'salu' and sw & cur.rd:
            n = max(n, 1)
        if cur.cls in ('ds', 'vmem') and prev.op.startswith(TRANS) and vw & cur.rd:
            n = max(n, 1)
    if prev.cls == 'mfma':
        big = {4: 8, 8: 12}[prev.passes]
        if cur.cls == 'mfma':
            if prev.wr & cur.srcAB:
                n = max(n, big)
            if prev.wr & cur.srcC:
                if not (prev.wr == cur.srcC and prev.passes == cur.passes):
                    n = max(n, {4: 6, 8: 10}[prev.passes])
        elif cur.cls in ('valu', 'ds', 'vmem'):
            if prev.wr & (cur.rd | cur.wr):
                n = max(n, big)
            if cur.cls == 'valu' and prev.srcC & cur.wr:
                n = max(n, {4: 3, 8: 7}[prev.passes])
    if prev.cls == 'salu':
        if ('s', 'm0') in prev.wr and cur.lds_dma:
            n = max(n, 1)
    if prev.cls == 'vmem' and prev.storedata:
        if prev.storedata & cur.wr:
            n = max(n, 2)
    return n

class Emitter:
    def __init__(self):
        self.lines = []
        self.hist = []
        self.nops = 0
    def raw(self, s):
        self.lines.append(s)
    def label(self, name):
        self.lines.append(name + ':')
    def flush_hazards(self, n=12):
        self('s_nop %d' % (n - 1))
    def __call__(self, text):
        for line in text.split('\n'):
            line = line.strip()
            if not line or line.startswith(';'):
                if line: self.lines.append('    ' + line)
                continue
            ins = parse(line)
            need = 0
            dist = 0
            for p in reversed(self.hist):
                r = required(p, ins)
                if r > dist:
                    need = max(need, r - dist)
                dist += p.ws
                if dist >= 20:
                    break
            if need > 0:
                nop = parse('s_nop %d' % (need - 1))
                self.lines.append('    s_nop %d ; auto' % (need - 1))
                self.hist.append(nop)
                self.nops += 1
            self.lines.append('    ' + line)
            self.hist.append(ins)
            if len(self.hist) > 64:
                self.hist = self.hist[-40:]
    def text(self):
        return '\n'.join(self.lines) + '\n'
```

```python
import sys
from emit import Emitter

DIAG = '--diag' in sys.argv
KNAME = 'standalone__deep_cross_pnn__recsys_kernel'

LDS_P = 0
LDS_WP = 131072
LDS_STG = 131072
LDS_SLAB = 155648
LDS_SCR = 155648
LDS_SCR2 = 155648 + 256
WS_STREAM = 0
WS_INBOX = 1 << 20
INBOX_STRIDE = 40960
WS_DIAG = 16 << 20
SPIN_LIMIT = 200000

sT, sW1, sWS, sIDX, sWP, sOUT = 's[24:27]', 's[28:31]', 's[32:35]', 's[36:39]', 's[40:43]', 's[44:47]'
sW, sHS, sFG = 's48', 's49', 's50'
sA, sB, sC, sD = 's51', 's52', 's53', 's54'
sSTAGE, sW1O, sW1O2, sSTR, sHALF, sLIM = 's56', 's57', 's58', 's59', 's60', 's61'
sPLO, sPHI = 's62', 's63'
sSEND, sMYIN, sIN2 = 's64', 's65', 's66'
sB1 = [68, 69, 70, 71]; sW2 = [72, 73, 74, 75]; sB2 = 's76'
sC0, sC1 = 's77', 's78'
sSTAMP = 80

vTID = 0
vPW, vLIN, vSTRV, vW1V = 1, 2, 3, 8
vS = 4
vW1T, vPOLL, vZERO = 9, 10, 11
vPK = 12
vTMP, vTMP2 = 14, 15
vW1P = 16
vST = 32
vD = 96
vBF = 128
vACC = 192

e = Emitter()
nstamp = [0]
def stamp():
    if not DIAG: return
    n = nstamp[0]; nstamp[0] += 1
    e('s_memrealtime s[98:99]')
    e('s_waitcnt lgkmcnt(0)')
    e('s_mov_b32 s%d, s98' % (sSTAMP + n))

def v(i, n=1):
    return 'v%d' % i if n == 1 else 'v[%d:%d]' % (i, i + n - 1)
def a(i, n=1):
    return 'a%d' % i if n == 1 else 'a[%d:%d]' % (i, i + n - 1)

def srd(dst, ptr, nbytes):
    d = int(dst[2:dst.index(':')])
    e('s_mov_b32 s%d, s%d' % (d, ptr))
    e('s_and_b32 s%d, s%d, 0xffff' % (d + 1, ptr + 1))
    e('s_mov_b32 s%d, %d' % (d + 2, nbytes))
    e('s_mov_b32 s%d, 0x00020000' % (d + 3))

e.raw('; @launch grid=(256,1,1) block=(256,1,1) lds=163840')
e.raw('.amdgcn_target "amdgcn-amd-amdhsa--gfx950"')
e.raw('.text')
e.raw('.globl %s' % KNAME)
e.raw('.p2align 8')
e.raw('.type %s,@function' % KNAME)
e.label(KNAME)
e('s_cmp_ge_u32 s2, 256')
e('s_cbranch_scc1 L_end')
e('s_load_dwordx16 s[4:19], s[0:1], 0')
e('s_load_dwordx4 s[20:23], s[0:1], 64')
e('s_getpc_b64 s[96:97]')
e('v_lshrrev_b32 v1, 6, v0')
e('v_readfirstlane_b32 %s, v1' % sW)
e('s_and_b32 %s, s2, 7' % sA)
e('s_lshl_b32 %s, %s, 4' % (sA, sA))
e('s_bfe_u32 %s, s2, 0x40003' % sB)
e('s_add_u32 %s, %s, %s' % (sHS, sA, sB))
e('s_lshr_b32 %s, s2, 7' % sFG)
e('s_mov_b32 %s, 0x05040100' % sPLO)
e('s_mov_b32 %s, 0x07060302' % sPHI)
e('v_mov_b32 %s, 0' % v(vZERO))
e('v_and_b32 v2, 63, v0')
e('s_waitcnt lgkmcnt(0)')
stamp()
srd(sIDX, 4, 1638400)
srd(sT, 6, 256000)
srd(sWP, 8, 20000)
srd(sW1, 10, 13107200)
srd(sWS, 22, 268435456)
srd(sOUT, 18, 8192)

e('s_lshr_b32 %s, s2, 5' % sA)
e('s_lshl_b32 %s, %s, 9' % (sA, sA))
e('s_and_b32 %s, s2, 3' % sB)
e('s_lshl_b32 %s, %s, 7' % (sB, sB))
e('s_add_u32 %s, %s, %s' % (sA, sA, sB))
e('s_bfe_u32 %s, s2, 0x30002' % sB)
e('s_add_u32 %s, %s, %s' % (sA, sA, sB))
e('s_mul_i32 %s, %s, 400' % (sA, sA))
vl, vseg, vfgs, vrem, vm, vhi, vrow, vc0 = 32, 33, 34, 35, 36, 37, 38, 39
e('v_and_b32 %s, 15, v0' % v(vl))
e('v_lshrrev_b32 %s, 4, v0' % v(vseg))
e('v_cmp_le_u32 vcc, 6, %s' % v(vseg))
e('v_cndmask_b32 %s, 0, 1, vcc' % v(vfgs))
e('v_mul_u32_u24 %s, 6, %s' % (v(vrem), v(vfgs)))
e('v_sub_u32 %s, %s, %s' % (v(vrem), v(vseg), v(vrem)))
e('v_cmp_le_u32 vcc, 12, %s' % v(vseg))
e('v_cndmask_b32 %s, 15, 3, vcc' % v(vm))
e('v_xor_b32 %s, 15, %s' % (v(vhi), v(vm)))
e('v_and_b32 %s, %s, %s' % (v(vhi), v(vhi), v(vl)))
e('v_lshrrev_b32 %s, 1, %s' % (v(vrow), v(vrem)))
e('v_lshlrev_b32 %s, 4, %s' % (v(vrow), v(vrow)))
e('v_mad_u32_u24 %s, %s, 48, %s' % (v(vrow), v(vfgs), v(vrow)))
e('v_lshlrev_b32 %s, 2, %s' % (v(vrow), v(vrow)))
e('s_movk_i32 %s, 3200' % sB)
e('v_mad_u32_u24 %s, %s, %s, %s' % (v(vrow), v(vl), sB, v(vrow)))
e('v_and_b32 %s, 1, %s' % (v(vc0), v(vrem)))
e('v_lshl_add_u32 %s, %s, 3, %s' % (v(vc0), v(vc0), v(vl)))
vC, vADR, vVAL = 40, 48, 56
for t in range(8):
    e('v_add_u32 %s, %d, %s' % (v(vC + t), t, v(vc0)))
    e('v_and_b32 %s, %s, %s' % (v(vC + t), v(vC + t), v(vm)))
    e('v_lshl_add_u32 %s, %s, 2, %s' % (v(vADR + t), v(vC + t), v(vrow)))
    e('v_or_b32 %s, %s, %s' % (v(vC + t), v(vC + t), v(vhi)))
    e('buffer_load_dword %s, %s, %s, %s offen' % (v(vVAL + t), v(vADR + t), sIDX, sA))

e('v_lshlrev_b32 %s, 4, v2' % v(vLIN))
e('s_mul_i32 %s, s2, 6400' % sA)
e('s_lshl_b32 %s, %s, 10' % (sB, sW))
e('s_add_u32 %s, %s, %s' % (sA, sA, sB))
e('s_add_u32 m0, %s, %d' % (sB, LDS_SLAB))
e('buffer_load_dwordx4 %s, %s, %s offen lds' % (v(vLIN), sIDX, sA))
e('s_add_u32 %s, %s, 4096' % (sA, sA))
e('s_add_u32 m0, m0, 4096')
e('buffer_load_dwordx4 %s, %s, %s offen lds' % (v(vLIN), sIDX, sA))
e('s_mul_i32 %s, %s, 6144' % (sA, sW))
e('s_add_u32 m0, %s, %d' % (sA, LDS_WP))
for i in range(6):
    if i == 4:
        e('s_add_u32 %s, %s, 4096' % (sA, sA))
        e('s_add_u32 m0, m0, 4096')
    e('buffer_load_dwordx4 %s, %s, %s offen offset:%d lds' % (v(vLIN), sWP, sA, (i % 4) * 1024))

vTD = vTMP2
e('v_lshrrev_b32 %s, 7, %s' % (v(vTMP), v(vLIN)))
e('v_bfe_u32 %s, %s, 4, 3' % (v(vTD), v(vLIN)))
e('v_xor_b32 %s, %s, %s' % (v(vTD), v(vTD), v(vTMP)))
e('v_lshlrev_b32 %s, 4, %s' % (v(vTD), v(vTD)))
e('v_lshl_add_u32 %s, %s, 8, %s' % (v(vTD), v(vTMP), v(vTD)))

def table_dma(half, tag):
    e('s_lshl_b32 %s, %s, 16' % (sA, sW))
    if half: e('s_add_u32 %s, %s, 128' % (sA, sA))
    e('s_lshl_b32 m0, %s, 15' % sW)
    e('s_mov_b32 %s, 8' % sB)
    e.label('L_tdma%s' % tag)
    for i in range(4):
        e('buffer_load_dwordx4 %s, %s, %s offen lds' % (v(vTD), sT, sA))
        e('s_add_u32 m0, m0, 1024')
        e('s_add_u32 %s, %s, 2048' % (sA, sA))
    e('s_sub_u32 %s, %s, 1' % (sB, sB))
    e('s_cmp_lg_u32 %s, 0' % sB)
    e('s_cbranch_scc1 L_tdma%s' % tag)
table_dma(0, 'A')

e('s_lshr_b32 %s, s2, 3' % sA)
e('s_lshl_b32 %s, %s, 10' % (sA, sA))
e('s_and_b32 %s, s2, 7' % sB)
e('s_lshl_b32 %s, %s, 7' % (sB, sB))
e('s_add_u32 %s, %s, %s' % (sA, sA, sB))
e('v_lshlrev_b32 %s, 15, v0' % v(64))
e('buffer_load_dword %s, %s, %s, %s offen' % (v(252), v(64), sW1, sA))
e('s_add_u32 %s, %s, 0x800000' % (sA, sA))
e('buffer_load_dword %s, %s, %s, %s offen' % (v(253), v(64), sW1, sA))
e('v_lshlrev_b32 %s, 7, v0' % v(64))
e('s_and_b32 s96, s96, 0xffffff00')
e('v_min_u32 %s, L_end-%s, %s' % (v(64), KNAME, v(64)))
e('global_load_dword %s, %s, s[96:97]' % (v(254), v(64)))

e('s_waitcnt vmcnt(43)')
for t in range(8):
    e('v_lshl_add_u32 %s, %s, 4, %s' % (v(vVAL + t), v(vVAL + t), v(vC + t)))
for t in range(4):
    e('v_lshl_or_b32 %s, %s, 16, %s' % (v(vADR + t), v(vVAL + 2 * t + 1), v(vVAL + 2 * t)))
e('v_cmp_eq_u32 vcc, 3, %s' % v(vm))
e('v_mov_b32 %s, %s' % (v(vC), sFG))
e('v_cndmask_b32 %s, %s, %s, vcc' % (v(vC + 1), v(vfgs), v(vC)))
e('v_cndmask_b32 %s, 8, 0, vcc' % v(vC + 2))
e('v_cmp_eq_u32 vcc, %s, %s' % (v(vC), v(vfgs)))
e('v_cndmask_b32 %s, 0, %s, vcc' % (v(vC + 2), v(vC + 2)))
e('v_lshrrev_b32 %s, 1, %s' % (v(vC + 3), v(vrem)))
e('v_lshl_add_u32 %s, %s, 4, %s' % (v(vC + 2), v(vC + 3), v(vC + 2)))
e('v_lshl_add_u32 %s, %s, 8, %s' % (v(vC + 2), v(vC + 1), v(vC + 2)))
e('v_lshlrev_b32 %s, 11, %s' % (v(vC + 2), v(vC + 2)))
e('v_and_b32 %s, 1, %s' % (v(vC + 3), v(vrem)))
e('v_lshl_add_u32 %s, %s, 10, %s' % (v(vC + 2), v(vC + 3), v(vC + 2)))
e('v_lshl_add_u32 %s, %s, 4, %s' % (v(vC + 2), v(vl), v(vC + 2)))
e('v_cmp_lt_u32 vcc, 12, %s' % v(vseg))
e('v_mov_b32 %s, 0x7ff00000' % v(vC + 3))
e('v_cndmask_b32 %s, %s, %s, vcc' % (v(vC + 2), v(vC + 2), v(vC + 3)))
e('s_bfe_u32 %s, s2, 0x20005' % sA)
e('s_lshl_b32 %s, %s, 17' % (sA, sA))
e('s_bfe_u32 %s, s2, 0x30002' % sB)
e('s_lshl_b32 %s, %s, 11' % (sB, sB))
e('s_add_u32 %s, %s, %s' % (sA, sA, sB))
e('s_and_b32 %s, s2, 3' % sB)
e('s_lshl_b32 %s, %s, 8' % (sB, sB))
e('s_add_u32 %s, %s, %s' % (sA, sA, sB))
e('buffer_store_dwordx4 %s, %s, %s, %s offen sc1' % (v(vADR, 4), v(vC + 2), sWS, sA))

vU = 32
vEA0 = 144
vEA1 = 172
vPD = 200
vPA = 212
vX = 220
pairs = [(x, y) for x in range(7) for y in range(x, 7)]
e('s_waitcnt vmcnt(36)')
e('s_barrier')
vi, vq, vTR, vTT, vEI = vX, vX + 1, vX + 2, vX + 3, vX + 4
e('v_and_b32 %s, 15, v0' % v(vi))
e('v_bfe_u32 %s, v0, 4, 2' % v(vq))
e('v_lshrrev_b32 %s, 2, %s' % (v(vTR), v(vi)))
e('v_lshl_add_u32 %s, %s, 2, %s' % (v(vTR), v(vq), v(vTR)))
e('s_movk_i32 %s, 200' % sA)
e('v_mul_lo_u32 %s, %s, %s' % (v(vTR), v(vTR), sA))
e('v_and_b32 %s, 3, %s' % (v(vTT), v(vi)))
e('v_lshl_add_u32 %s, %s, 3, %s' % (v(vTR), v(vTT), v(vTR)))
e('v_add_u32 %s, %d, %s' % (v(vTR), LDS_WP, v(vTR)))
e('v_mul_lo_u32 %s, %s, %s' % (v(vTT), v(vi), sA))
e('v_lshl_add_u32 %s, %s, 3, %s' % (v(vTT), v(vq), v(vTT)))
e('v_add_u32 %s, %d, %s' % (v(vTT), LDS_WP, v(vTT)))
e('s_mul_i32 %s, %s, 1600' % (sA, sW))
e('s_add_u32 %s, %s, %d' % (sA, sA, LDS_SLAB))
e('v_lshl_add_u32 %s, %s, 2, %s' % (v(vEI), v(vi), sA))
for n in range(4):
    for blk in range(7):
        e('ds_read_b32 %s, %s offset:%d' % (v(vEA0 + n * 7 + blk), v(vEI), n * 400 + blk * 64))
    e('s_waitcnt lgkmcnt(0)')
e('v_cmp_gt_u32 vcc, 4, %s' % v(vi))
e('v_mov_b32 %s, 1008' % v(vX + 5))
for n in range(4):
    r = vEA0 + n * 7 + 6
    e('v_cndmask_b32 %s, %s, %s, vcc' % (v(r), v(vX + 5), v(r)))
for k in range(28):
    r = vEA0 + k
    e('v_xor_b32 %s, %s, %s' % (v(vX + 6), v(r), v(vq)))
    e('v_and_b32 %s, 7, %s' % (v(vX + 6), v(vX + 6)))
    e('v_lshlrev_b32 %s, 4, %s' % (v(vX + 6), v(vX + 6)))
    e('v_lshl_add_u32 %s, %s, 7, %s' % (v(r), v(r), v(vX + 6)))
    e('v_xor_b32 %s, 64, %s' % (v(vEA1 + k), v(r)))
e('s_mov_b32 %s, 0xffff0000' % sA)
for g in range(0, 28, 4):
    for p in range(g, g + 4):
        (x, y) = pairs[p]
        t = vX + 8 + (p - g) * 4
        e('ds_read_b64_tr_b16 %s, %s offset:%d' % (v(t, 2), v(vTR), x * 3200 + y * 32))
        if x != y:
            e('ds_read_b64 %s, %s offset:%d' % (v(t + 2, 2), v(vTT), y * 3200 + x * 32))
    e('s_waitcnt lgkmcnt(0)')
    for p in range(g, g + 4):
        (x, y) = pairs[p]
        t = vX + 8 + (p - g) * 4
        u = vU + p * 4
        e('v_lshlrev_b32 %s, 16, %s' % (v(u), v(t)))
        e('v_and_b32 %s, %s, %s' % (v(u + 1), sA, v(t)))
        e('v_lshlrev_b32 %s, 16, %s' % (v(u + 2), v(t + 1)))
        e('v_and_b32 %s, %s, %s' % (v(u + 3), sA, v(t + 1)))
        if x != y:
            e('v_lshlrev_b32 %s, 16, %s' % (v(t), v(t + 2)))
            e('v_and_b32 %s, %s, %s' % (v(t + 1), sA, v(t + 2)))
            e('v_add_f32 %s, %s, %s' % (v(u), v(u), v(t)))
            e('v_add_f32 %s, %s, %s' % (v(u + 1), v(u + 1), v(t + 1)))
            e('v_lshlrev_b32 %s, 16, %s' % (v(t), v(t + 3)))
            e('v_and_b32 %s, %s, %s' % (v(t + 1), sA, v(t + 3)))
            e('v_add_f32 %s, %s, %s' % (v(u + 2), v(u + 2), v(t)))
            e('v_add_f32 %s, %s, %s' % (v(u + 3), v(u + 3), v(t + 1)))
for k in range(8):
    e('v_mov_b32 %s, 0' % v(vPA + k))

e('v_lshrrev_b32 %s, 4, v0' % v(vX + 6))
e('v_lshlrev_b32 %s, 13, %s' % (v(vX + 6), v(vX + 6)))
e('s_lshl_b32 %s, %s, 3' % (sA, sHS))
e('v_add_u32 %s, %s, %s' % (v(vX + 6), sA, v(vX + 6)))
e('v_lshl_add_u32 %s, %s, 17, %s' % (v(vW1V), v(vi), v(vX + 6)))
e('v_bfe_u32 %s, %s, 1, 2' % (v(vX + 7), v(vi)))
e('v_lshl_add_u32 %s, %s, 17, %s' % (v(vW1T), v(vX + 7), v(vX + 6)))
e('s_lshl_b32 %s, %s, 15' % (sA, sW))
e('v_lshlrev_b32 %s, 9, %s' % (v(vPW), v(vq)))
e('v_lshl_add_u32 %s, %s, 3, %s' % (v(vPW), v(vi), v(vPW)))
e('v_add_u32 %s, %s, %s' % (v(vPW), sA, v(vPW)))
e('v_lshrrev_b32 %s, 2, %s' % (v(vX + 6), v(vi)))
e('v_cmp_eq_u32 vcc, %s, %s' % (v(vX + 6), v(vq)))
e('v_mov_b32 %s, 0x3f80' % v(vX + 7))
e('v_cndmask_b32 %s, 0, %s, vcc' % (v(vX + 7), v(vX + 7)))
e('v_and_b32 %s, 1, %s' % (v(vX + 6), v(vi)))
e('v_lshlrev_b32 %s, 4, %s' % (v(vX + 6), v(vX + 6)))
e('v_lshlrev_b32 %s, %s, %s' % (v(vX + 7), v(vX + 6), v(vX + 7)))
e('v_and_b32 %s, 2, %s' % (v(vX + 6), v(vi)))
e('v_cmp_eq_u32 vcc, 0, %s' % v(vX + 6))
e('v_cndmask_b32 %s, 0, %s, vcc' % (v(vS), v(vX + 7)))
e('v_cndmask_b32 %s, %s, 0, vcc' % (v(vS + 1), v(vX + 7)))
e('v_mov_b32 %s, %s' % (v(vS + 2), v(vS)))
e('v_mov_b32 %s, %s' % (v(vS + 3), v(vS + 1)))
vAF0, vAF1 = vX + 8, vX + 9
e('v_and_b32 %s, 7, %s' % (v(vAF0), v(vi)))
e('v_xor_b32 %s, %s, %s' % (v(vAF0), v(vAF0), v(vq)))
e('v_lshlrev_b32 %s, 4, %s' % (v(vAF0), v(vAF0)))
e('v_lshl_add_u32 %s, %s, 7, %s' % (v(vAF0), v(vi), v(vAF0)))
e('v_add_u32 %s, %s, %s' % (v(vAF0), sA, v(vAF0)))
e('v_xor_b32 %s, 64, %s' % (v(vAF1), v(vAF0)))
vSW = vX + 10
e('s_mul_i32 %s, s2, %d' % (sMYIN, INBOX_STRIDE))
e('s_add_u32 %s, %s, %d' % (sMYIN, sMYIN, WS_INBOX))
e('s_xor_b32 %s, s2, 128' % sA)
e('s_mul_i32 %s, %s, %d' % (sSEND, sA, INBOX_STRIDE))
e('s_add_u32 %s, %s, %d' % (sSEND, sSEND, WS_INBOX))
e('s_lshl_b32 %s, %s, 13' % (sA, sW))
e('s_add_u32 %s, %s, %s' % (sSEND, sSEND, sA))
e('s_mul_i32 %s, %s, %d' % (sW1O, sFG, 48 * 128 * 1024))
e('s_add_u32 %s, %s, 4096' % (sW1O2, sW1O))
e('s_lshl_b32 %s, %s, 2' % (sA, sFG))
e('s_add_u32 %s, %s, %s' % (sA, sA, sW))
e('s_lshl_b32 %s, %s, 17' % (sSTR, sA))
e('s_lshl_b32 %s, %s, 3' % (sA, sHS))
e('s_add_u32 s12, s12, %s' % sA)
e('s_addc_u32 s13, s13, 0')
e('s_add_u32 s14, s14, %s' % sA)
e('s_addc_u32 s15, s15, 0')
e('s_load_dwordx2 s[68:69], s[12:13], 0')
e('s_load_dwordx2 s[72:73], s[14:15], 0')
e('s_load_dword %s, s[16:17], 0' % sB2)
e('s_waitcnt lgkmcnt(0)')
for base in (68, 72):
    e('s_and_b32 s%d, s%d, 0xffff0000' % (base + 3, base + 1))
    e('s_lshl_b32 s%d, s%d, 16' % (base + 2, base + 1))
    e('s_and_b32 s%d, s%d, 0xffff0000' % (base + 1, base))
    e('s_lshl_b32 s%d, s%d, 16' % (base, base))
e('s_lshl_b32 %s, %s, 16' % (sB2, sB2))

def w1_loads(vaddr):
    for r in range(8):
        e('buffer_load_dwordx2 %s, %s, %s, %s offen offset:%d' % (v(vW1P + 2 * r, 2), v(vaddr), sW1, sW1O if r < 4 else sW1O2, (r % 4) * 1024))

def w1_transpose_store(vout, vsw):
    for t in range(4):
        for p in range(4):
            ra = vW1P + (2 * p) * 2 + (t >> 1)
            rb = vW1P + (2 * p + 1) * 2 + (t >> 1)
            e('v_perm_b32 %s, %s, %s, %s' % (v(vout + t * 4 + p), v(rb), v(ra), sPHI if (t & 1) else sPLO))
        e('ds_write_b128 %s, %s offset:%d' % (v(vsw), v(vout + t * 4, 4), t * 4096))

e('s_waitcnt vmcnt(0)')
e('s_barrier')
stamp()
e('s_cmp_lg_u32 %s, 0' % sW)
e('s_cbranch_scc1 L_noarr1')
e('s_mov_b64 exec, 1')
e('v_mov_b32 %s, 1' % v(vX + 6))
e('global_atomic_add %s, %s, s[20:21]' % (v(vZERO), v(vX + 6)))
e('s_mov_b64 exec, -1')
e.label('L_noarr1')
w1_loads(vW1V)
for k in range(4):
    e('v_mov_b32 %s, -1' % v(vX + 12 + k))
e('v_lshlrev_b32 %s, 4, v0' % v(vX + 6))
e('s_mov_b32 %s, %s' % (sA, sMYIN))
for k in range(10):
    e('buffer_store_dwordx4 %s, %s, %s, %s offen sc1' % (v(vX + 12, 4), v(vX + 6), sWS, sA))
    e('s_add_u32 %s, %s, 4096' % (sA, sA))
e('s_mov_b32 %s, 0' % sHALF)

aE = [128, 184]
def e_loads(n):
    buf = aE[n & 1]
    for blk in range(7):
        e('ds_read_b128 %s, %s' % (a(buf + blk * 8, 4), v(vEA0 + n * 7 + blk)))
        e('ds_read_b128 %s, %s' % (a(buf + blk * 8 + 4, 4), v(vEA1 + n * 7 + blk)))
e.label('L_half')
e_loads(0)
seq = [(n, p) for n in range(4) for p in range(28)]
def pnn_fma(k, lo, hi):
    n, p = seq[k]
    d = vPD + (k % 3) * 4
    for r in range(lo, hi):
        e('v_fmac_f32 %s, %s, %s' % (v(vPA + n * 2 + (r & 1)), v(d + r), v(vU + p * 4 + r)))
for k, (n, p) in enumerate(seq):
    if p == 0:
        e('s_waitcnt lgkmcnt(0)')
        if n < 3:
            e_loads(n + 1)
    (x, y) = pairs[p]
    buf = aE[n & 1]
    d = vPD + (k % 3) * 4
    e('v_mfma_f32_16x16x32_bf16 %s, %s, %s, 0' % (v(d, 4), a(buf + x * 8, 4), a(buf + y * 8, 4)))
    if k >= 2: pnn_fma(k - 2, 0, 2)
    e('v_mfma_f32_16x16x32_bf16 %s, %s, %s, %s' % (v(d, 4), a(buf + x * 8 + 4, 4), a(buf + y * 8 + 4, 4), v(d, 4)))
    if k >= 2: pnn_fma(k - 2, 2, 4)
pnn_fma(len(seq) - 2, 0, 4)
pnn_fma(len(seq) - 1, 0, 4)

def a_fill(half):
    for n in range(16):
        e('ds_read_b128 %s, %s offset:%d' % (a(half * 128 + n * 8, 4), v(vAF0), n * 2048))
        e('ds_read_b128 %s, %s offset:%d' % (a(half * 128 + n * 8 + 4, 4), v(vAF1), n * 2048))
        if n % 4 == 3:
            e('s_waitcnt lgkmcnt(0)')
e('s_cmp_lg_u32 %s, 0' % sHALF)
e('s_cbranch_scc1 L_half2')
a_fill(0)
e('s_barrier')
stamp()
table_dma(1, 'B')
e('s_lshl_b32 %s, %s, 10' % (sA, sW))
e('s_add_u32 %s, %s, %d' % (sA, sA, LDS_STG))
e('v_add_u32 %s, %s, %s' % (v(vSW), sA, v(vLIN)))
e('s_waitcnt vmcnt(42)')
w1_transpose_store(vX + 16, vSW)
e('s_waitcnt vmcnt(0) lgkmcnt(0)')
e('s_barrier')
stamp()
e('s_mov_b32 %s, 1' % sHALF)
e('s_branch L_half')
e.label('L_half2')
e.flush_hazards(12)
a_fill(1)
stamp()
for n in range(4):
    e('v_add_f32 %s, %s, %s' % (v(vPD + n), v(vPA + 2 * n), v(vPA + 2 * n + 1)))
for sh in ('row_shr:1', 'row_shr:2', 'row_shr:4', 'row_shr:8'):
    for n in range(4):
        e('v_add_f32_dpp %s, %s, %s %s row_mask:0xf bank_mask:0xf' % (v(vPD + n), v(vPD + n), v(vPD + n), sh))
for n in range(4):
    e('v_add_f32_dpp %s, %s, %s row_bcast:15 row_mask:0xa bank_mask:0xf' % (v(vPD + n), v(vPD + n), v(vPD + n)))
for n in range(4):
    e('v_add_f32_dpp %s, %s, %s row_bcast:31 row_mask:0xc bank_mask:0xf' % (v(vPD + n), v(vPD + n), v(vPD + n)))
e('s_lshl_b32 %s, %s, 4' % (sA, sW))
e('s_add_u32 %s, %s, %d' % (sA, sA, LDS_SCR))
e('v_mov_b32 %s, %s' % (v(vX + 6), sA))
e('s_mov_b32 exec_lo, 0')
e('s_mov_b32 exec_hi, 0x80000000')
e('ds_write_b128 %s, %s' % (v(vX + 6), v(vPD, 4)))
e('s_mov_b64 exec, -1')
e('v_mov_b32 %s, %s' % (v(vTMP), v(vSW)))
e('v_add_u32 %s, %d, %s' % (v(vTMP2), LDS_STG, v(vLIN)))
vSWm, vSRm = vTMP, vTMP2
e('s_cmp_lg_u32 %s, 0' % sW)
e('s_cbranch_scc1 L_nopoll1')
e('s_mov_b64 exec, 1')
e('v_mov_b32 %s, 1' % v(vX + 6))
e('global_atomic_add %s, %s, s[20:21] offset:128' % (v(vZERO), v(vX + 6)))
e('s_mov_b64 exec, -1')
e('s_mov_b32 %s, %d' % (sLIM, SPIN_LIMIT))
e.label('L_poll1')
e('global_load_dword %s, %s, s[20:21] sc1' % (v(vPOLL), v(vZERO)))
e('s_waitcnt vmcnt(0)')
e('v_readfirstlane_b32 %s, %s' % (sA, v(vPOLL)))
e('s_cmp_ge_u32 %s, 256' % sA)
e('s_cbranch_scc1 L_nopoll1')
e('s_sleep 2')
e('s_sub_u32 %s, %s, 1' % (sLIM, sLIM))
e('s_cbranch_scc0 L_poll1')
e.label('L_nopoll1')
e('s_waitcnt lgkmcnt(0)')
e('s_barrier')
stamp()

def stream_load(slot):
    e('buffer_load_dwordx4 %s, %s, %s, %s offen sc1' % (v(vST + slot * 8, 4), v(vLIN), sWS, sSTR))
    e('buffer_load_dwordx4 %s, %s, %s, %s offen offset:1024 sc1' % (v(vST + slot * 8 + 4, 4), v(vLIN), sWS, sSTR))
    e('s_add_u32 %s, %s, 2048' % (sSTR, sSTR))
for x in range(8):
    stream_load(x)
for k in range(64):
    e('v_mov_b32 %s, 0' % v(vACC + k))
e('s_mov_b32 %s, 0' % sSTAGE)

def p_compute(ntiles, writer):
    pend = []
    for n in range(17):
        st = n & 1
        fill = writer(n - 1) if n >= 1 else []
        if n == 16:
            for f in fill: e(f)
            break
        mf = []
        for ks in range(4):
            for t in range(ntiles):
                d = vD + st * 16 + t * 4
                mf.append('v_mfma_f32_16x16x32_bf16 %s, %s, %s, %s' % (
                    v(d, 4), a((ks >> 1) * 128 + n * 8 + (ks & 1) * 4, 4), v(vBF + (t * 4 + ks) * 4, 4),
                    '0' if ks == 0 else v(d, 4)))
        lead = 7 if ntiles == 4 else 7
        lead = min(lead, len(mf) - 1)
        fi = 0
        for i, m in enumerate(mf):
            e(m)
            if i >= lead - 1:
                remaining_gaps = len(mf) - i
                k = -(-(len(fill) - fi) // remaining_gaps)
                for _ in range(k):
                    if fi < len(fill):
                        e(fill[fi]); fi += 1

def writer4(n):
    st = n & 1
    D = [vD + st * 16 + t * 4 for t in range(4)]
    dst = [vPK, D[0], D[1], D[2]]
    out = []
    for r in range(4):
        out.append('v_cvt_pk_bf16_f32 %s, %s, %s' % (v(dst[r]), v(D[0] + r), v(D[1] + r)))
        out.append('v_cvt_pk_bf16_f32 %s, %s, %s' % (v(dst[r] + 1), v(D[2] + r), v(D[3] + r)))
        out.append('ds_write_b64 %s, %s offset:%d' % (v(vPW), v(dst[r], 2), (16 * n + r) * 128))
    return out

vG = vD
vAD = vBF
def gather(tiles, steps, after_tile, before_tile):
    reads = [(ti, t) for ti in range(len(tiles)) for t in range(steps)]
    npairs = len(reads) // 2
    DEPTH = 7
    def issue(pi):
        for h in range(2):
            ti, t = reads[2 * pi + h]
            if t == 0: before_tile(ti)
            x, slot = tiles[ti]
            src = vST + slot * 8 + (t >> 1)
            ad = vAD + ((2 * pi + h) % 16)
            e('v_lshlrev_b32_sdwa %s, 3, %s dst_sel:DWORD dst_unused:UNUSED_PAD src0_sel:DWORD src1_sel:WORD_%d' % (v(ad), v(src), t & 1))
        for h in range(2):
            ad = vAD + ((2 * pi + h) % 16)
            e('ds_read_b64 %s, %s' % (v(vG + (pi % 8) * 4 + 2 * h, 2), v(ad)))
        ti, t = reads[2 * pi + 1]
        if t == steps - 1: after_tile(ti, 'issued')
    for pi in range(min(DEPTH, npairs)):
        issue(pi)
    for pi in range(npairs):
        if pi + DEPTH < npairs:
            issue(pi + DEPTH)
            e('s_waitcnt lgkmcnt(%d)' % (2 * DEPTH))
        else:
            e('s_waitcnt lgkmcnt(%d)' % (2 * (npairs - 1 - pi)))
        ti, t = reads[2 * pi]
        x, slot = tiles[ti]
        e('v_mfma_f32_16x16x32_bf16 %s, %s, %s, %s' % (v(vACC + x * 4, 4), v(vS, 4), v(vG + (pi % 8) * 4, 4), v(vACC + x * 4, 4)))
        if reads[2 * pi + 1][1] == steps - 1: after_tile(ti, 'done')

e.label('L_stage')
e.flush_hazards(4)
for k in range(16):
    e('ds_read_b128 %s, %s offset:%d' % (v(vBF + k * 4, 4), v(vSRm), k * 1024))
e('s_add_u32 %s, %s, %d' % (sW1O, sW1O, 16 * 128 * 1024))
e('s_cmp_lg_u32 %s, 2' % sSTAGE)
e('s_cbranch_scc1 L_w1n')
e('s_mov_b32 %s, %d' % (sW1O, 96 * 128 * 1024))
e('v_mov_b32 %s, %s' % (v(vW1V), v(vW1T)))
e.label('L_w1n')
e('s_add_u32 %s, %s, 4096' % (sW1O2, sW1O))
w1_loads(vW1V)
e('global_load_dword %s, %s, s[20:21] offset:128 sc1' % (v(vPOLL), v(vZERO)))
e('s_waitcnt lgkmcnt(0)')
p_compute(4, writer4)
e('s_waitcnt lgkmcnt(0)')
e('s_barrier')
stamp_in_loop = False
e('s_cmp_lg_u32 %s, 2' % sSTAGE)
e('s_cbranch_scc1 L_noclr')
e('s_mov_b32 %s, %d' % (sLIM, SPIN_LIMIT))
e.label('L_pollc')
e('s_waitcnt vmcnt(0)')
e('v_readfirstlane_b32 %s, %s' % (sA, v(vPOLL)))
e('s_cmp_ge_u32 %s, 256' % sA)
e('s_cbranch_scc1 L_noclr')
e('s_sleep 2')
e('global_load_dword %s, %s, s[20:21] offset:128 sc1' % (v(vPOLL), v(vZERO)))
e('s_sub_u32 %s, %s, 1' % (sLIM, sLIM))
e('s_cbranch_scc0 L_pollc')
e.label('L_noclr')

sendq = []
def before_main(ti):
    e('s_waitcnt vmcnt(%d)' % (23 if ti < 8 else 14))
def send_tile(x):
    e('s_cmp_lg_u32 %s, 2' % sSTAGE)
    e('s_cbranch_scc1 L_nosend%d' % x)
    e('buffer_store_dwordx4 %s, %s, %s, %s offen offset:%d sc1' % (v(vACC + x * 4, 4), v(vLIN), sWS, sSEND if x < 4 else sD, (x % 4) * 1024))
    e.label('L_nosend%d' % x)
def after_main(ti, what):
    if what == 'issued':
        stream_load(ti % 8)
    else:
        if 1 <= ti <= 8:
            send_tile(ti - 1)
e('s_add_u32 %s, %s, 4096' % (sD, sSEND))
gather([(x, x % 8) for x in range(16)], 16, after_main, before_main)
e('s_cmp_eq_u32 %s, 2' % sSTAGE)
e('s_cbranch_scc1 L_tail')
w1_transpose_store(vBF + 16, vSWm)
e('s_waitcnt lgkmcnt(0)')
e('s_barrier')
e('s_add_u32 %s, %s, 1' % (sSTAGE, sSTAGE))
e('s_branch L_stage')

e.label('L_tail')
e.flush_hazards(4)
stamp()
e('v_and_b32 %s, 1, v0' % v(vBF))
e('v_cmp_eq_u32 vcc, 1, %s' % v(vBF))
for r in range(8):
    e('v_cndmask_b32 %s, %s, %s, vcc' % (v(vW1P + 2 * r), v(vW1P + 2 * r), v(vW1P + 2 * r + 1)))
for t in range(2):
    for p in range(4):
        e('v_perm_b32 %s, %s, %s, %s' % (v(vBF + 16 + t * 4 + p), v(vW1P + (2 * p + 1) * 2), v(vW1P + (2 * p) * 2), sPHI if t else sPLO))
    e('ds_write_b128 %s, %s offset:%d' % (v(vSWm), v(vBF + 16 + t * 4, 4), t * 4096))
e('s_waitcnt lgkmcnt(0)')
e('s_barrier')
for k in range(8):
    e('ds_read_b128 %s, %s offset:%d' % (v(vBF + k * 4, 4), v(vSRm), k * 1024))
vPWT = vW1P
e('v_and_b32 %s, 15, v0' % v(vW1P + 1))
e('v_lshlrev_b32 %s, 2, %s' % (v(vW1P + 1), v(vW1P + 1)))
e('v_sub_u32 %s, %s, %s' % (v(vPWT), v(vPW), v(vW1P + 1)))
e('s_waitcnt lgkmcnt(0)')
def writer2(n):
    st = n & 1
    D = [vD + st * 16 + t * 4 for t in range(2)]
    out = []
    for r in range(4):
        out.append('v_cvt_pk_bf16_f32 %s, %s, %s' % (v(D[0] + r), v(D[0] + r), v(D[1] + r)))
        out.append('ds_write_b32 %s, %s offset:%d' % (v(vPWT), v(D[0] + r), (16 * n + r) * 128))
        out.append('ds_write_b32 %s, %s offset:%d' % (v(vPWT), v(D[0] + r), (16 * n + r) * 128 + 64))
    return out
p_compute(2, writer2)
e('s_waitcnt vmcnt(0) lgkmcnt(0)')
e('s_barrier')
vIN = vACC
e('s_lshl_b32 %s, %s, 13' % (sA, sW))
e('s_add_u32 %s, %s, %s' % (sA, sA, sMYIN))
e('s_add_u32 %s, %s, 4096' % (sB, sA))
def inbox1_loads():
    for x in range(8):
        e('buffer_load_dwordx4 %s, %s, %s, %s offen offset:%d sc1' % (v(vIN + x * 4, 4), v(vLIN), sWS, sA if x < 4 else sB, (x % 4) * 1024))
inbox1_loads()
gather([(8 + x, x) for x in range(8)], 4, lambda ti, w: None, lambda ti: None)
stamp()
e('s_mov_b32 %s, %d' % (sLIM, SPIN_LIMIT))
e.label('L_rx1')
e('s_waitcnt vmcnt(0)')
e('v_max3_u32 %s, %s, %s, %s' % (v(vBF), v(vIN), v(vIN + 1), v(vIN + 2)))
for k in range(3, 31, 2):
    e('v_max3_u32 %s, %s, %s, %s' % (v(vBF), v(vBF), v(vIN + k), v(vIN + k + 1)))
e('v_max_u32 %s, %s, %s' % (v(vBF), v(vBF), v(vIN + 31)))
e('v_cmp_eq_u32 vcc, -1, %s' % v(vBF))
e('s_cbranch_vccz L_rx1done')
e('s_sleep 1')
inbox1_loads()
e('s_sub_u32 %s, %s, 1' % (sLIM, sLIM))
e('s_cbranch_scc0 L_rx1')
e.label('L_rx1done')
stamp()
e('s_mov_b32 %s, 0xc0135761' % sC0)
e('s_mov_b32 %s, 0xbdd2d3e8' % sC1)
vL = vBF + 8
vC0 = vBF + 1
e('v_mov_b32 %s, %s' % (v(vC0), sC0))
for x in range(8):
    T = vD + (x & 1) * 16
    for h in range(4):
        X = vACC + (8 + x) * 4 + h
        e('v_add_f32 %s, %s, %s' % (v(X), v(X), v(vIN + x * 4 + h)))
        e('v_add_f32 %s, s%d, %s' % (v(X), sB1[h], v(X)))
    for h in range(4):
        X = vACC + (8 + x) * 4 + h
        e('v_mul_f32 %s, %s, %s' % (v(T + h), v(X), v(X)))
        e('v_fma_f32 %s, %s, %s, %s' % (v(T + h), v(T + h), sC1, v(vC0)))
        e('v_mul_f32 %s, %s, %s' % (v(T + h), v(T + h), v(X)))
    for h in range(4):
        e('v_exp_f32 %s, %s' % (v(T + h), v(T + h)))
    for h in range(4):
        e('v_add_f32 %s, 1.0, %s' % (v(T + h), v(T + h)))
    for h in range(4):
        e('v_rcp_f32 %s, %s' % (v(T + h), v(T + h)))
    for h in range(4):
        X = vACC + (8 + x) * 4 + h
        e('v_mul_f32 %s, %s, %s' % (v(T + h), v(T + h), v(X)))
    e('v_mul_f32 %s, s%d, %s' % (v(vL + x), sW2[0], v(T)))
    for h in range(1, 4):
        e('v_fma_f32 %s, %s, s%d, %s' % (v(vL + x), v(T + h), sW2[h], v(vL + x)))
e('v_lshrrev_b32 %s, 5, %s' % (v(vBF), v(vLIN)))
e('s_mov_b32 %s, %d' % (sA, INBOX_STRIDE))
e('v_mul_lo_u32 %s, %s, %s' % (v(vBF), v(vBF), sA))
e('v_and_b32 %s, 16, %s' % (v(vBF + 1), v(vLIN)))
e('v_lshl_add_u32 %s, %s, 1, %s' % (v(vBF), v(vBF + 1), v(vBF)))
e('s_lshl_b32 %s, %s, 2' % (sA, sFG))
e('s_add_u32 %s, %s, %s' % (sA, sA, sW))
e('s_mul_i32 %s, %s, %d' % (sA, sA, 32 * INBOX_STRIDE))
e('s_lshl_b32 %s, %s, 6' % (sB, sHS))
e('s_add_u32 %s, %s, %s' % (sA, sA, sB))
e('s_add_u32 %s, %s, %d' % (sA, sA, WS_INBOX + 32768))
e('buffer_store_dwordx4 %s, %s, %s, %s offen sc1' % (v(vL, 4), v(vBF), sWS, sA))
e('buffer_store_dwordx4 %s, %s, %s, %s offen offset:16 sc1' % (v(vL + 4, 4), v(vBF), sWS, sA))
stamp()
vF = vD
e('v_lshlrev_b32 %s, 4, v0' % v(vBF + 2))
e('s_add_u32 %s, %s, 32768' % (sA, sMYIN))
e('s_add_u32 %s, %s, 4096' % (sB, sA))
e('s_mov_b32 %s, %d' % (sLIM, SPIN_LIMIT))
e.label('L_rx2')
e('buffer_load_dwordx4 %s, %s, %s, %s offen sc1' % (v(vF, 4), v(vBF + 2), sWS, sA))
e('buffer_load_dwordx4 %s, %s, %s, %s offen sc1' % (v(vF + 4, 4), v(vBF + 2), sWS, sB))
e('s_waitcnt vmcnt(0)')
e('v_max3_u32 %s, %s, %s, %s' % (v(vBF), v(vF), v(vF + 1), v(vF + 2)))
e('v_max3_u32 %s, %s, %s, %s' % (v(vBF), v(vBF), v(vF + 3), v(vF + 4)))
e('v_max3_u32 %s, %s, %s, %s' % (v(vBF), v(vBF), v(vF + 5), v(vF + 6)))
e('v_max_u32 %s, %s, %s' % (v(vBF), v(vBF), v(vF + 7)))
e('v_cmp_eq_u32 vcc, -1, %s' % v(vBF))
e('s_cbranch_vccz L_rx2done')
e('s_sleep 1')
e('s_sub_u32 %s, %s, 1' % (sLIM, sLIM))
e('s_cbranch_scc0 L_rx2')
e.label('L_rx2done')
stamp()
for k in range(4):
    e('v_add_f32 %s, %s, %s' % (v(vF + k), v(vF + k), v(vF + 4 + k)))
for sh in ('row_shr:4', 'row_shr:8'):
    for k in range(4):
        e('v_add_f32_dpp %s, %s, %s %s row_mask:0xf bank_mask:0xf' % (v(vF + k), v(vF + k), v(vF + k), sh))
e('v_and_b32 %s, 3, v0' % v(vBF))
e('v_lshlrev_b32 %s, 8, %s' % (v(vBF), v(vBF)))
e('v_lshrrev_b32 %s, 4, v0' % v(vBF + 1))
e('v_lshl_add_u32 %s, %s, 2, %s' % (v(vBF), v(vBF + 1), v(vBF)))
e('v_add_u32 %s, %d, %s' % (v(vBF), LDS_SCR2, v(vBF)))
e('s_mov_b32 exec_lo, 0xf000f000')
e('s_mov_b32 exec_hi, 0xf000f000')
for k in range(4):
    e('ds_write_b32 %s, %s offset:%d' % (v(vBF), v(vF + k), k * 64))
e('s_mov_b64 exec, -1')
e('s_waitcnt lgkmcnt(0)')
e('s_barrier')
e('s_cmp_lg_u32 %s, 0' % sW)
e('s_cbranch_scc1 L_end')
e('v_and_b32 %s, 15, v0' % v(vBF))
e('v_lshlrev_b32 %s, 6, %s' % (v(vBF + 1), v(vBF)))
e('v_add_u32 %s, %d, %s' % (v(vBF + 1), LDS_SCR2, v(vBF + 1)))
e('v_lshlrev_b32 %s, 2, %s' % (v(vBF + 2), v(vBF)))
e('v_add_u32 %s, %d, %s' % (v(vBF + 2), LDS_SCR, v(vBF + 2)))
for k in range(4):
    e('ds_read_b128 %s, %s offset:%d' % (v(vF + 4 * k, 4), v(vBF + 1), k * 16))
e('ds_read_b32 %s, %s' % (v(vF + 16), v(vBF + 2)))
e('s_waitcnt lgkmcnt(0)')
for st in (8, 4, 2, 1):
    for k in range(st):
        e('v_add_f32 %s, %s, %s' % (v(vF + k), v(vF + k), v(vF + k + st)))
e('v_cvt_pk_bf16_f32 %s, %s, %s' % (v(vF + 1), v(vF), v(vF + 16)))
e('v_lshlrev_b32 %s, 16, %s' % (v(vF + 2), v(vF + 1)))
e('v_and_b32 %s, 0xffff0000, %s' % (v(vF + 3), v(vF + 1)))
e('v_add_f32 %s, %s, %s' % (v(vF + 2), sB2, v(vF + 2)))
e('v_cvt_pk_bf16_f32 %s, %s, %s' % (v(vF + 2), v(vF + 2), v(vF + 2)))
e('v_lshlrev_b32 %s, 16, %s' % (v(vF + 2), v(vF + 2)))
e('v_add_f32 %s, %s, %s' % (v(vF + 2), v(vF + 2), v(vF + 3)))
e('v_cvt_pk_bf16_f32 %s, %s, %s' % (v(vF + 2), v(vF + 2), v(vF + 2)))
e('v_lshlrev_b32 %s, 1, %s' % (v(vBF), v(vBF)))
e('s_lshl_b32 %s, s2, 5' % sA)
e('s_mov_b64 exec, 0xffff')
e('buffer_store_short %s, %s, %s, %s offen' % (v(vF + 2), v(vBF), sOUT, sA))
if DIAG:
    e('s_waitcnt vmcnt(0)')
    stamp()
    e('s_mov_b64 exec, -1')
    e('v_mov_b32 %s, 0' % v(vF))
    for n in range(nstamp[0]):
        e('v_writelane_b32 %s, s%d, %d' % (v(vF), sSTAMP + n, n))
    e('v_lshlrev_b32 %s, 2, v0' % v(vBF))
    e('s_lshl_b32 %s, s2, 8' % sA)
    e('s_add_u32 %s, %s, %d' % (sA, sA, WS_DIAG))
    e('buffer_store_dword %s, %s, %s, %s offen' % (v(vF), v(vBF), sWS, sA))
e.label('L_end')
e('s_endpgm')
e.raw('''.section .rodata,"a"
.p2align 6
.amdhsa_kernel %s
  .amdhsa_next_free_vgpr 512
  .amdhsa_next_free_sgpr 102
  .amdhsa_accum_offset 256
  .amdhsa_group_segment_fixed_size 0
  .amdhsa_kernarg_size 80
  .amdhsa_user_sgpr_count 2
  .amdhsa_user_sgpr_kernarg_segment_ptr 1
  .amdhsa_system_sgpr_workgroup_id_x 1
.end_amdhsa_kernel''' % KNAME)
out = [a_ for a_ in sys.argv[1:] if not a_.startswith('--')]
open(out[0] if out else 'out.s', 'w').write(e.text())
sys.stderr.write('auto nops: %d, stamps %d\n' % (e.nops, nstamp[0]))
```
